```python
import torch

def _softmax(x, axis=-1):
    return torch.softmax(x, dim=axis)

def _gelu(x):
    return torch.nn.functional.gelu(x, approximate='tanh')

def _silu(x):
    return torch.nn.functional.silu(x)

def _sigmoid(x):
    return torch.sigmoid(x)

def _layernorm(x, axis=-1, eps=1e-05):
    m = x.mean(dim=axis, keepdim=True)
    v = x.var(dim=axis, keepdim=True, unbiased=False)
    return (x - m) / torch.sqrt(v + eps)

def _scatter_add(tgt, idx, src, axis=0):
    return tgt.clone().index_add_(axis, idx, src)

def _segment_sum(src, seg, n):
    out = torch.zeros((n,) + src.shape[1:], dtype=src.dtype)
    return out.index_add_(0, seg, src)

def _pad(x, pw):
    flat = tuple((v for pair in reversed(pw) for v in pair))
    return torch.nn.functional.pad(x, flat)
kernel_name = 'adaLN_cond__mha_block__dense_activation_relu__prompt'

def setup_inputs():

    _w = lambda a: (lambda t: t.to(torch.bfloat16) if t.is_floating_point() else t)(torch.as_tensor(a))

    def _A_setup():
        B, S, D, H = (1, 2048, 1024, 32)
        return {'x': _w((lambda *s: torch.randn(*s, dtype=torch.bfloat16) * 0.05)(B, S, D)), 'wqkv': _w((lambda *s: torch.randn(*s, dtype=torch.bfloat16) * 0.05)(D, 3 * D)), 'wo': _w((lambda *s: torch.randn(*s, dtype=torch.bfloat16) * 0.05)(D, D))}
    _A_in = _A_setup()

    def _B_setup():
        B, S, D, Dff = (1, 2048, 1024, 3584)
        return {'x': _w((lambda *s: torch.randn(*s, dtype=torch.bfloat16) * 0.05)(B, S, D)), 'w1': _w((lambda *s: torch.randn(*s, dtype=torch.bfloat16) * 0.05)(D, Dff)), 'w2': _w((lambda *s: torch.randn(*s, dtype=torch.bfloat16) * 0.05)(Dff, D))}
    _B_in = _B_setup()
    return {'A_x': _A_in['x'], 'A_wqkv': _A_in['wqkv'], 'A_wo': _A_in['wo'], 'B_x': _B_in['x'], 'B_w1': _B_in['w1'], 'B_w2': _B_in['w2'], 'c': _w((lambda *s: torch.randn(*s, dtype=torch.bfloat16) * 0.2)(1, 1024) * 8.0), 'w_mod': _w((lambda *s: torch.randn(*s, dtype=torch.bfloat16) * 0.2)(1024, 6 * 1024) * 1024 ** (-0.5) * 8.0)}

def reference(A_x, A_wqkv, A_wo, B_x, B_w1, B_w2, c, w_mod):

    def _A_ref(x, wqkv, wo):
        B, S, D = x.shape
        H = 32
        Dh = D // H
        qkv = (lambda x, *d: x.permute(*d))((x @ wqkv).reshape(B, S, 3, H, Dh), 2, 0, 3, 1, 4)
        q, k, v = (qkv[0], qkv[1], qkv[2])
        scores = torch.einsum('bhqd,bhkd->bhqk', q, k) * Dh ** (-0.5)
        p = _softmax(scores, axis=-1)
        o = torch.einsum('bhqk,bhkd->bhqd', p, v)
        return (lambda x, *d: x.permute(*d))(o, 0, 2, 1, 3).reshape(B, S, D) @ wo

    def _B_ref(x, w1, w2):
        h = torch.einsum('bsd,df->bsf', x, w1)
        zero = torch.zeros_like(h)
        h = torch.maximum(h, zero)
        return torch.einsum('bsf,fd->bsd', h, w2)
    x = A_x
    mod = (_silu(c) @ w_mod).reshape(c.shape[0], 6, 1, -1)
    sa, ca, ga, sb, cb, gb = (mod[:, 0].clone(), mod[:, 1].clone(), mod[:, 2].clone(), mod[:, 3].clone(), mod[:, 4].clone(), mod[:, 5].clone())
    h = _layernorm(x, axis=-1) * (1 + ca) + sa
    x = x + ga * _A_ref(h, A_wqkv, A_wo)
    h = _layernorm(x, axis=-1) * (1 + cb) + sb
    x = x + gb * _B_ref(h, B_w1, B_w2)
    return x
```

```python
NAME='adaLN_cond__mha_block__dense_activation_relu__prompt'
class Asm:
    def __init__(self):
        self.lines=[]
        self.kernels=[]
        self.launches=[]
        self.uid=0
    def __call__(self, s=''):
        for l in s.split('\n'):
            self.lines.append(l)
    def label(self, base='L'):
        self.uid+=1
        return f'{base}_{self.uid}'
    def begin(self, label):
        self(f'.globl {label}\n.p2align 8\n.type {label},@function\n{label}:')
    def end(self, label, vgpr=256, accum=256, sgpr=102):
        self.kernels.append((label,vgpr,accum,sgpr))
    def launch(self, label, grid, block, lds):
        self.launches.append((label,grid,block,lds))
    def text(self, header=''):
        o=[]
        if header: o.append(header)
        if len(self.launches)==1 and self.launches[0][0]==NAME+'_kernel':
            l,g,b,lds=self.launches[0]
            o.append(f'; @launch grid=({g},1,1) block=({b},1,1) lds={lds}')
        else:
            for l,g,b,lds in self.launches:
                o.append(f'; @launch kernel={l} grid=({g},1,1) block=({b},1,1) lds={lds}')
        o.append('.amdgcn_target "amdgcn-amd-amdhsa--gfx950"')
        o.append('.text')
        o+=self.lines
        o.append('.section .rodata,"a"')
        for l,v,a,s in self.kernels:
            o.append(f'''.p2align 6
.amdhsa_kernel {l}
  .amdhsa_next_free_vgpr {v}
  .amdhsa_next_free_sgpr {s}
  .amdhsa_accum_offset {a}
  .amdhsa_group_segment_fixed_size 0
  .amdhsa_kernarg_size 88
  .amdhsa_user_sgpr_count 2
  .amdhsa_user_sgpr_kernarg_segment_ptr 1
  .amdhsa_system_sgpr_workgroup_id_x 1
.end_amdhsa_kernel''')
        return '\n'.join(o)+'\n'
def srd(a, sreg, pbase, nbytes):
    a(f'''    s_mov_b32 s{sreg}, s{pbase}
    s_and_b32 s{sreg+1}, s{pbase+1}, 0xffff
    s_mov_b32 s{sreg+2}, {nbytes}
    s_mov_b32 s{sreg+3}, 0x20000''')
```

```python
from lib import *

def k_attn(a, label, pack='cvt'):
    end=a.label('END'); loop=a.label('LOOP'); main=a.label('MAIN'); fb=a.label('FB'); fbl=a.label('FBL'); done=a.label('DONE')
    CH=16384; NS=4
    FLAG=NS*CH
    VL=1; VOFF=2; VRD=3; VRB=4; VT=5
    Q=10
    KF=18
    VF=26
    ONE=34
    L=38
    O=44
    NEG=60
    S=[76,92]
    P=[108,116]
    E=124
    a.begin(label)
    guard(a,256,end)
    ldptr(a,4,KA_WS)
    waveid(a,22,VT)
    a(f'''    v_and_b32 v{VL}, 63, v0
    s_and_b32 s16, s2, 7
    s_lshr_b32 s17, s2, 3
    s_lshl_b32 s20, s16, 2
    s_lshr_b32 s18, s17, 3
    s_add_u32 s20, s20, s18          ; head
    s_and_b32 s21, s17, 7            ; q block
    s_lshl_b32 s23, s21, 3
    s_add_u32 s23, s23, s22
    v_lshlrev_b32 v{VOFF}, 4, v{VL}
    s_lshl_b32 s16, s20, 17          ; head*128KB
    s_waitcnt lgkmcnt(0)''')
    srd_dyn(a,8,4,16,131072,WS_KF)
    srd_dyn(a,12,4,16,131072,WS_VF)
    a('''    s_lshl_b32 s17, s23, 11
    s_add_u32 s16, s16, s17''')
    srd_dyn(a,16,4,16,2048,WS_QF)
    a(f'''    buffer_load_dwordx4 {v(Q,4)}, v{VOFF}, s[16:19], 0 offen
    buffer_load_dwordx4 {v(Q+4,4)}, v{VOFF}, s[16:19], 0 offen offset:1024
    s_lshl_b32 s26, s22, 10
    v_add_u32 v{VRD}, 0, v{VOFF}''')
    def dma(slotreg_imm, lines=False):
        pass
    def prologue_dma():
        a('    s_mov_b32 s24, s26')
        for c in range(3):
            a(f'''    s_add_u32 m0, s26, {c*CH}
    s_nop 0
    buffer_load_dwordx4 v{VOFF}, s[8:11], s24 offen lds
    s_add_u32 m0, s26, {c*CH+8192}
    s_nop 0
    buffer_load_dwordx4 v{VOFF}, s[12:15], s24 offen lds
    s_add_u32 s24, s24, 8192''')
    prologue_dma()
    a(f'''    v_and_b32 v{VT}, 7, v{VL}            ; row&7
    v_bfe_u32 v{VT+1}, v{VL}, 4, 1       ; g&1
    v_lshlrev_b32 v{VT+1}, 2, v{VT+1}    ; 0 or 4
    v_cmp_eq_u32 vcc, v{VT}, v{VT+1}
    v_mov_b32 v{VT+2}, 0x3f803f80
    s_nop 0
    v_cndmask_b32 v{ONE}, 0, v{VT+2}, vcc
    v_mov_b32 v{ONE+1}, v{ONE}
    v_mov_b32 v{ONE+2}, v{ONE}
    v_mov_b32 v{ONE+3}, v{ONE}
    s_mov_b32 s28, 0
    v_mov_b32 v{VT}, {FLAG}
    v_mov_b32 v{VT+1}, 0
    ds_write_b32 v{VT}, v{VT+1}
    s_waitcnt vmcnt(4) lgkmcnt(0)
    s_barrier''')
    MX=E
    def max_tiles(first):
        for t in range(4):
            a(f'''    ds_read_b128 {v(KF,4)}, v{VRD} offset:{t*2048}
    ds_read_b128 {v(KF+4,4)}, v{VRD} offset:{t*2048+1024}
    s_waitcnt lgkmcnt(0)
    v_mfma_f32_32x32x16_bf16 {v(S[0],16)}, {v(KF,4)}, {v(Q,4)}, 0
    v_mfma_f32_32x32x16_bf16 {v(S[0],16)}, {v(KF+4,4)}, {v(Q+4,4)}, {v(S[0],16)}
    s_nop 15''')
            if first and t==0:
                a(f'    v_max3_f32 v{MX}, v{S[0]}, v{S[0]+1}, v{S[0]+2}')
                for i in range(3,15,2): a(f'    v_max3_f32 v{MX}, v{MX}, v{S[0]+i}, v{S[0]+i+1}')
                a(f'    v_max_f32 v{MX}, v{MX}, v{S[0]+15}')
            else:
                for i in range(0,16,2): a(f'    v_max3_f32 v{MX}, v{MX}, v{S[0]+i}, v{S[0]+i+1}')
    max_tiles(True)
    a(f'{main}:')
    a(f'''    v_mov_b32 v{MX+1}, v{MX}
    s_nop 1
    v_permlane32_swap_b32 v{MX}, v{MX+1}
    s_nop 1
    v_max_f32 v{MX}, v{MX}, v{MX+1}
    v_sub_f32 v{MX}, 0, v{MX}''')
    for i in range(16): a(f'    v_mov_b32 v{NEG+i}, v{MX}')
    for i in range(16): a(f'    v_mov_b32 v{O+i}, 0')
    for i in range(4): a(f'    v_mov_b32 v{L+i}, 0')
    for i in range(8): a(f'    v_mov_b32 v{P[1]+i}, 0')
    a(f'''    ds_read_b128 {v(KF,4)}, v{VRD}
    ds_read_b128 {v(KF+4,4)}, v{VRD} offset:1024
    ds_read_b128 {v(VF,4)}, v{VRD} offset:8192
    ds_read_b128 {v(VF+4,4)}, v{VRD} offset:9216
    s_waitcnt lgkmcnt(0)
    v_mfma_f32_32x32x16_bf16 {v(S[0],16)}, {v(KF,4)}, {v(Q,4)}, {v(NEG,16)}
    v_mfma_f32_32x32x16_bf16 {v(S[0],16)}, {v(KF+4,4)}, {v(Q+4,4)}, {v(S[0],16)}
    ds_read_b128 {v(KF,4)}, v{VRD} offset:2048
    ds_read_b128 {v(KF+4,4)}, v{VRD} offset:3072
    s_mov_b32 s24, {3*8192}
    s_add_u32 s24, s24, s26
    s_mov_b32 s25, 0
    s_mov_b32 s27, 16
    v_mov_b32 v{VRB}, v{VRD}
    s_nop 7''')
    a(f'{loop}:')
    for t in range(4):
        cur=t%2; nxt=cur^1
        a('    s_waitcnt lgkmcnt(0)')
        pre=[]
        if t==2:
            a(f'''    s_waitcnt vmcnt(2)
    s_barrier
    s_add_u32 s29, s25, {3*CH}
    s_and_b32 s29, s29, {NS*CH-1}
    s_add_u32 s29, s29, s26
    s_mov_b32 m0, s29
    s_add_u32 s29, s29, 8192
    buffer_load_dwordx4 v{VOFF}, s[8:11], s24 offen lds
    s_mov_b32 m0, s29
    s_add_u32 s31, s25, {CH}
    buffer_load_dwordx4 v{VOFF}, s[12:15], s24 offen lds
    s_and_b32 s31, s31, {NS*CH-1}
    s_add_u32 s24, s24, 8192
    v_add_u32 v{VT}, s31, v{VRD}''')
        mf=[f'    v_mfma_f32_32x32x16_bf16 {v(S[nxt],16)}, {v(KF,4)}, {v(Q,4)}, {v(NEG,16)}',
            f'    v_mfma_f32_32x32x16_bf16 {v(S[nxt],16)}, {v(KF+4,4)}, {v(Q+4,4)}, {v(S[nxt],16)}',
            f'    v_mfma_f32_32x32x16_bf16 {v(O,16)}, {v(VF,4)}, {v(P[nxt],4)}, {v(O,16)}',
            f'    v_mfma_f32_32x32x16_bf16 {v(O,16)}, {v(VF+4,4)}, {v(P[nxt]+4,4)}, {v(O,16)}',
            f'    v_mfma_f32_16x16x32_bf16 {v(L,4)}, {v(ONE,4)}, {v(P[nxt],4)}, {v(L,4)}',
            f'    v_mfma_f32_16x16x32_bf16 {v(L,4)}, {v(ONE,4)}, {v(P[nxt]+4,4)}, {v(L,4)}']
        if t<2: kb,ko=VRB,(t+2)*2048
        else:   kb,ko=VT,(t-2)*2048
        rk=[f'    ds_read_b128 {v(KF,4)}, v{kb} offset:{ko}', f'    ds_read_b128 {v(KF+4,4)}, v{kb} offset:{ko+1024}']
        rv=[f'    ds_read_b128 {v(VF,4)}, v{VRB} offset:{8192+t*2048}', f'    ds_read_b128 {v(VF+4,4)}, v{VRB} offset:{8192+t*2048+1024}']
        va=[]
        s0=S[cur]; p0=P[cur]
        for j in range(8):
            if pack=='cvt':
                va.append(f'    v_exp_f32 v{s0+2*j}, v{s0+2*j}')
                va.append(f'    v_exp_f32 v{s0+2*j+1}, v{s0+2*j+1}')
            else:
                va.append(f'    v_exp_f32 v{s0+2*j}, v{s0+2*j}')
                va.append(f'    v_exp_f32 v{p0+j}, v{s0+2*j+1}')
        cv=[]
        for j in range(8):
            if pack=='cvt': cv.append(f'    v_cvt_pk_bf16_f32 v{p0+j}, v{s0+2*j}, v{s0+2*j+1}')
            else: cv.append(f'    v_mov_b32_sdwa v{p0+j}, v{s0+2*j} dst_sel:WORD_0 dst_unused:UNUSED_PRESERVE src0_sel:WORD_1')
        vs=[]
        for j in range(8):
            vs+=va[2*j:2*j+2]
            if j>=1: vs.append(cv[j-1])
        vs.append('    s_nop 0'); vs.append(cv[7])
        seq=[]; k=0
        for mi,m in enumerate(mf):
            seq.append(m)
            if mi==1: seq+=rk
            if mi==5: seq+=rv
            n=4 if mi<5 else len(vs)-k
            seq+=vs[k:k+n]; k+=n
        for l in seq: a(l)
        if t==3:
            a(f'''    s_add_u32 s25, s25, {CH}
    s_and_b32 s25, s25, {NS*CH-1}
    v_mov_b32 v{VRB}, v{VT}''')
    a(f'''    s_sub_u32 s27, s27, 1
    s_cmp_lg_u32 s27, 0
    s_cbranch_scc1 {loop}''')
    a(f'''    s_waitcnt lgkmcnt(0)
    v_mfma_f32_32x32x16_bf16 {v(O,16)}, {v(VF,4)}, {v(P[1],4)}, {v(O,16)}
    v_mfma_f32_32x32x16_bf16 {v(O,16)}, {v(VF+4,4)}, {v(P[1]+4,4)}, {v(O,16)}
    v_mfma_f32_16x16x32_bf16 {v(L,4)}, {v(ONE,4)}, {v(P[1],4)}, {v(L,4)}
    v_mfma_f32_16x16x32_bf16 {v(L,4)}, {v(ONE,4)}, {v(P[1]+4,4)}, {v(L,4)}
    s_waitcnt vmcnt(0)
    s_nop 15''')
    a(f'''    s_cmp_lg_u32 s28, 0
    s_cbranch_scc1 {done}
    v_max3_f32 v{E}, |v{O}|, |v{O+1}|, |v{O+2}|''')
    for i in range(3,15,2): a(f'    v_max3_f32 v{E}, v{E}, |v{O+i}|, |v{O+i+1}|')
    a(f'''    v_max3_f32 v{E}, v{E}, |v{O+15}|, |v{L}|
    v_mov_b32 v{E+1}, 0x7f7fffff
    v_cmp_nle_f32 vcc, v{E}, v{E+1}''')
    a(f'    v_add_f32 v{E+2}, v{O}, v{O+1}')
    for i in range(2,16): a(f'    v_add_f32 v{E+2}, v{E+2}, v{O+i}')
    a(f'''    v_add_f32 v{E+2}, v{E+2}, v{L}
    v_cmp_u_f32 s[30:31], v{E+2}, v{E+2}
    s_nop 3
    s_or_b64 vcc, vcc, s[30:31]
    v_mov_b32 v{VT}, {FLAG}
    v_mov_b32 v{VT+1}, 1
    s_and_saveexec_b64 s[30:31], vcc
    ds_write_b32 v{VT}, v{VT+1}
    s_mov_b64 exec, s[30:31]
    s_waitcnt lgkmcnt(0)
    s_barrier
    ds_read_b32 v{VT+1}, v{VT}
    s_waitcnt lgkmcnt(0)
    v_readfirstlane_b32 s29, v{VT+1}
    s_nop 3
    s_cmp_eq_u32 s29, 0
    s_cbranch_scc1 {done}
    s_mov_b32 s28, 1
    s_mov_b32 s24, s26
    s_mov_b32 s27, 16
    v_mov_b32 v{MX}, 0xff800000
{fbl}:
    s_barrier
    s_mov_b32 m0, s26
    s_nop 0
    buffer_load_dwordx4 v{VOFF}, s[8:11], s24 offen lds
    s_waitcnt vmcnt(0)
    s_barrier''')
    max_tiles(False)
    a(f'''    s_add_u32 s24, s24, 8192
    s_sub_u32 s27, s27, 1
    s_cmp_lg_u32 s27, 0
    s_cbranch_scc1 {fbl}
    s_barrier''')
    prologue_dma()
    a(f'''    s_waitcnt vmcnt(4)
    s_barrier
    s_branch {main}
{done}:
    v_rcp_f32 v{E}, v{L}
    s_nop 0''')
    for i in range(16): a(f'    v_mul_f32 v{O+i}, v{O+i}, v{E}')
    for j in range(8): a(f'    v_cvt_pk_bf16_f32 v{P[0]+j}, v{O+2*j}, v{O+2*j+1}')
    a('''    s_lshl_b32 s16, s23, 16
    s_lshl_b32 s17, s20, 11
    s_add_u32 s16, s16, s17''')
    srd_dyn(a,16,4,16,2048,WS_OF)
    a(f'''    buffer_store_dwordx4 {v(P[0],4)}, v{VOFF}, s[16:19], 0 offen
    buffer_store_dwordx4 {v(P[0]+4,4)}, v{VOFF}, s[16:19], 0 offen offset:1024
{end}:
    s_endpgm''')
    a.end(label, vgpr=128, accum=128)
    a.launch(label,256,512,NS*CH+64)
```

```python
from lib import *

class Cfg: pass

def interleave(mf, fill, maxper=None):
    out=[]; n=len(mf); k=0
    per=-(-len(fill)//n) if maxper is None else maxper
    for i,m in enumerate(mf):
        out.append(m)
        take=fill[k:k+per]; k+=len(take); out+=take
    out+=fill[k:]
    return out

def k_gemm(a, label, kind):
    c=Cfg()
    if kind=='qkv':
        c.NSUB=6; c.K=1024; c.BK=64; c.NS=4; c.U=1; c.ldw=6144; c.kaW=KA_WQKV; c.actoff=WS_H1; c.nkb=32; c.panel='p128'; c.NP=3
    elif kind=='wo':
        c.NSUB=2; c.K=1024; c.BK=128; c.NS=4; c.U=2; c.ldw=2048; c.kaW=KA_WO; c.actoff=WS_OF; c.nkb=32; c.panel='p128'; c.NP=1
    elif kind=='ffn1':
        c.NSUB=7; c.K=1024; c.BK=64; c.NS=4; c.U=1; c.ldw=7168; c.kaW=KA_W1; c.actoff=WS_X1G; c.nkb=32; c.panel='lin'; c.RS=448
    elif kind=='ffn2':
        c.NSUB=2; c.K=3584; c.BK=128; c.NS=4; c.U=2; c.ldw=2048; c.kaW=KA_W2; c.actoff=WS_HH; c.nkb=112; c.panel='p128'; c.NP=1
    NSUB,K,BK,NS,U=c.NSUB,c.K,c.BK,c.NS,c.U
    wbytes=K*c.ldw
    SS=BK//16
    NU=SS//U
    NST=K//BK
    assert NST%NS==0
    if c.panel=='p128':
        PB=BK*128
        SB=c.NP*PB
    else:
        SB=BK*c.RS
    nW=SB//1024//4
    assert nW*4096==SB
    nA=BK//16
    PERST=nW+nA
    assert (NS-1)*PERST<=63
    end=a.label('END'); loop=a.label('LOOP')
    V_LANE=1; V_AOFF=2; V_RD0=3; V_RD1=4; V_RB0=5; V_RB1=6
    V_W=8
    V_T=16
    ACC=32
    WF=ACC+NSUB*16
    WFN=U*NSUB*4
    EPI=WF+2*WFN
    AN=nA*4
    def acc(sb): return ACC+16*sb
    def wf(buf,u,sb): return WF+buf*WFN+(u*NSUB+sb)*4
    def act(slot,ss): return slot*AN+ss*4
    a.begin(label)
    guard(a,256,end)
    ldptr(a,4,KA_WS); ldptr(a,6,c.kaW)
    if kind=='ffn2': ldptr(a,34,KA_OUT)
    waveid(a,22,V_T)
    a(f'    v_and_b32 v{V_LANE}, 63, v0')
    a('    s_and_b32 s16, s2, 7\n    s_lshr_b32 s17, s2, 3')
    if kind in('qkv','ffn1'):
        a('''    s_lshr_b32 s18, s16, 2
    s_lshl_b32 s18, s18, 3
    s_lshr_b32 s19, s17, 2
    s_add_u32 s20, s18, s19          ; rb
    s_and_b32 s18, s16, 3
    s_lshl_b32 s18, s18, 2
    s_and_b32 s19, s17, 3
    s_add_u32 s21, s18, s19          ; ct''')
    else:
        a('''    s_lshr_b32 s18, s16, 1
    s_lshl_b32 s18, s18, 2
    s_lshr_b32 s19, s17, 3
    s_add_u32 s20, s18, s19          ; rb
    s_and_b32 s18, s16, 1
    s_lshl_b32 s18, s18, 3
    s_and_b32 s19, s17, 7
    s_add_u32 s21, s18, s19          ; ct''')
    a('''    s_lshl_b32 s23, s20, 2
    s_add_u32 s23, s23, s22          ; tt''')
    a(f'    s_mul_i32 s16, s23, {c.nkb*2048}')
    a('    s_waitcnt lgkmcnt(0)')
    srd_dyn(a,8,4,16,c.nkb*2048,c.actoff)
    srd(a,12,6,wbytes)
    a('    s_mov_b32 s30, 0xffff0000')
    a(f'    v_lshlrev_b32 v{V_AOFF}, 4, v{V_LANE}')
    if c.panel=='p128':
        dma_lane_off128(a, V_T+1, V_LANE, c.ldw, V_T+2, V_T+3)
        rgs=BK//8
        for i in range(nW):
            a(f'''    s_mul_i32 s16, s22, {nW}
    s_add_u32 s16, s16, {i}          ; g
    s_lshr_b32 s17, s16, {rgs.bit_length()-1}   ; panel
    s_and_b32 s18, s16, {rgs-1}      ; rg
    s_mul_i32 s18, s18, {8*c.ldw}
    s_mul_i32 s17, s17, 2048
    s_add_u32 s18, s18, s17
    s_lshl_b32 s17, s21, 7
    s_add_u32 s18, s18, s17
    v_add_u32 v{V_W+i}, s18, v{V_T+1}''')
        tr_lane_base(a, V_RD0, V_RD1, V_LANE, V_T+2, V_T+3, V_T+4)
    else:
        RS=c.RS
        for i in range(nW):
            a(f'''    s_mul_i32 s16, s22, {nW*1024}
    s_add_u32 s16, s16, {i*1024}
    v_add_u32 v{V_T+1}, s16, v{V_AOFF}
    v_cvt_f32_u32 v{V_T+2}, v{V_T+1}
    v_add_f32 v{V_T+2}, 0.5, v{V_T+2}
    v_mul_f32 v{V_T+2}, {1.0/RS!r}, v{V_T+2}
    v_cvt_u32_f32 v{V_T+2}, v{V_T+2}          ; row
    v_mul_u32_u24 v{V_T+3}, {RS}, v{V_T+2}
    v_sub_u32 v{V_T+3}, v{V_T+1}, v{V_T+3}
    v_mul_u32_u24 v{V_T+2}, {c.ldw}, v{V_T+2}
    v_add_u32 v{V_T+2}, v{V_T+2}, v{V_T+3}
    s_mul_i32 s17, s21, {RS}
    v_add_u32 v{V_W+i}, s17, v{V_T+2}''')
        a(f'''    v_lshrrev_b32 v{V_T+1}, 5, v{V_LANE}
    v_lshlrev_b32 v{V_T+1}, 2, v{V_T+1}
    v_bfe_u32 v{V_T+2}, v{V_LANE}, 2, 2
    v_add_u32 v{V_T+1}, v{V_T+1}, v{V_T+2}
    v_mul_u32_u24 v{V_T+1}, {RS}, v{V_T+1}
    v_bfe_u32 v{V_T+2}, v{V_LANE}, 4, 1
    v_lshlrev_b32 v{V_T+2}, 5, v{V_T+2}
    v_and_b32 v{V_T+3}, 3, v{V_LANE}
    v_lshlrev_b32 v{V_T+3}, 3, v{V_T+3}
    v_add3_u32 v{V_RD0}, v{V_T+1}, v{V_T+2}, v{V_T+3}
    v_mov_b32 v{V_RD1}, v{V_RD0}''')
    a(f'    s_mul_i32 s26, s22, {nW*1024}')
    a('    s_mov_b32 s24, 0\n    s_mov_b32 s25, 0')
    npre=epi_prefetch(a,kind,c,EPI,V_T,V_LANE,V_AOFF)
    def dma_lines(slot):
        L=[]
        for i in range(nW):
            L.append(f'    s_add_u32 m0, s26, {slot*SB+i*1024}')
            L.append(f'    buffer_load_dwordx4 v{V_W+i}, s[12:15], s25 offen lds')
        return L
    def act_lines(slot, lo=0, hi=None):
        L=[]
        for j in range(lo, nA if hi is None else hi):
            soff='s24'
            off=j*1024
            if off>=4096:
                L.append(f'    buffer_load_dwordx4 {a_(act(slot,j),4)}, v{V_AOFF}, s[8:11], s33 offen offset:{off-4096}')
            else:
                L.append(f'    buffer_load_dwordx4 {a_(act(slot,j),4)}, v{V_AOFF}, s[8:11], s24 offen offset:{off}')
        return L
    def adv_lines():
        L=[f'    s_add_u32 s24, s24, {BK*64}', f'    s_add_u32 s25, s25, {BK*c.ldw}']
        if nA>4: L.append('    s_add_u32 s33, s24, 4096')
        return L
    def rd_lines(slot, unit, buf):
        L=[]
        for u in range(U):
            ss=unit*U+u
            for sb in range(NSUB):
                for jg in range(2):
                    k=16*ss+8*jg
                    if c.panel=='p128':
                        p=sb//2; sp=sb%2
                        off=p*PB+k*128; base=V_RB0 if sp==0 else V_RB1
                    else:
                        off=k*c.RS+sb*64; base=V_RB0
                    assert off<65536
                    r=wf(buf,u,sb)+2*jg
                    L.append(f'    ds_read_b64_tr_b16 {v(r,2)}, v{base} offset:{off}')
        return L
    def setbase_lines(slot):
        L=[f'    v_add_u32 v{V_RB0}, {slot*SB}, v{V_RD0}']
        if c.panel=='p128': L.append(f'    v_add_u32 v{V_RB1}, {slot*SB}, v{V_RD1}')
        return L
    def mfma_lines(slot, unit, buf):
        L=[]
        for u in range(U):
            ss=unit*U+u
            for sb in range(NSUB):
                W=v(wf(buf,u,sb),4); A=a_(act(slot,ss),4); D=v(acc(sb),16)
                if kind=='qkv' and sb>=4:
                    L.append(f'    v_mfma_f32_32x32x16_bf16 {D}, {A}, {W}, {D}')
                else:
                    L.append(f'    v_mfma_f32_32x32x16_bf16 {D}, {W}, {A}, {D}')
        return L
    if nA>4: a('    s_add_u32 s33, s24, 4096')
    for st in range(NS):
        dl=dma_lines(st)
        for i in range(0,len(dl),2):
            a(dl[i]); a('    s_nop 0'); a(dl[i+1])
        for l in act_lines(st): a(l)
        for l in adv_lines(): a(l)
    for i in range(NSUB*16): a(f'    v_mov_b32 v{ACC+i}, 0')
    a(f'    s_waitcnt vmcnt({(NS-1)*PERST})')
    a('    s_barrier')
    for l in setbase_lines(0): a(l)
    for l in rd_lines(0,0,0): a(l)
    a(f'    s_mov_b32 s27, {NST//NS}')
    a(f'{loop}:')
    buf=0
    for st in range(NS):
        for un in range(NU):
            last=(un==NU-1)
            a('    s_waitcnt lgkmcnt(0)')
            mf=mfma_lines(st,un,buf)
            if not last:
                fill=rd_lines(st,un+1,buf^1)
                lines=interleave(mf,fill)
            else:
                a(f'    s_waitcnt vmcnt({(NS-2)*PERST})')
                a('    s_barrier')
                nst=(st+1)%NS
                for l in setbase_lines(nst): a(l)
                rd=rd_lines(nst,0,buf^1)
                dm=dma_lines(st)
                pre_act=act_lines(st,0,nA-U)
                post_act=act_lines(st,nA-U,nA)
                fill=[]
                ri=0
                for i in range(0,len(dm),2):
                    fill.append(dm[i])
                    if ri<len(rd): fill.append(rd[ri]); ri+=1
                    else: fill.append('    s_nop 0')
                    fill.append(dm[i+1])
                    if ri<len(rd): fill.append(rd[ri]); ri+=1
                fill=rd[ri:]+fill if False else fill+rd[ri:]
                fill+=pre_act
                lines=interleave(mf,fill)
                lines+=post_act+adv_lines()
            for l in lines: a(l)
            buf^=1
    assert buf==0
    a(f'''    s_sub_u32 s27, s27, 1
    s_cmp_lg_u32 s27, 0
    s_cbranch_scc1 {loop}
    s_waitcnt vmcnt(0) lgkmcnt(0)
    s_nop 15''')
    epilogue(a,kind,c,ACC,WF,EPI,V_T,V_LANE,V_AOFF)
    a(f'{end}:\n    s_endpgm')
    nacc=NS*AN
    a.end(label, vgpr=256+nacc, accum=256)
    a.launch(label,256,256,NS*SB+ (2048 if kind=='ffn1' else 0))

def epi_prefetch(a,kind,c,EPI,T,VL,VAOFF):
    if kind=='qkv': return 0
    a(f'''    v_lshrrev_b32 v{T+8}, 5, v{VL}
    v_lshlrev_b32 v{T+8}, 4, v{T+8}''')
    if kind in('wo','ffn2'):
        off = WS_XF if kind=='wo' else WS_X1
        a(f'''    s_lshl_b32 s16, s23, 16
    s_lshl_b32 s17, s21, 12
    s_add_u32 s16, s16, s17''')
        srd_dyn(a,40,4,16,4096,off)
        for j in range(4):
            a(f'    buffer_load_dwordx4 {v(EPI+4*j,4)}, v{VAOFF}, s[40:43], 0 offen offset:{1024*j}')
        srd(a,44,4,6144*4,WS_MOD)
        goff = 2*4096 if kind=='wo' else 5*4096
        a(f'''    s_lshl_b32 s16, s21, 8
    s_add_u32 s16, s16, {goff}''')
        for sb in range(2):
            for q in range(4):
                a(f'    buffer_load_dwordx4 {v(EPI+16+16*sb+4*q,4)}, v{T+8}, s[44:47], s16 offen offset:{128*sb+32*q}')
        if kind=='wo':
            a(f'''    s_lshl_b32 s16, s21, 8
    s_add_u32 s16, s16, {4*4096}''')
            for sb in range(2):
                for q in range(4):
                    a(f'    buffer_load_dwordx4 {v(EPI+48+16*sb+4*q,4)}, v{T+8}, s[44:47], s16 offen offset:{128*sb+32*q}')
        return 0
    if kind=='ffn1':
        srd(a,40,4,16*2048*8,WS_STAT)
        a(f'''    v_and_b32 v{T+9}, 31, v{VL}
    v_lshlrev_b32 v{T+9}, 3, v{T+9}
    s_lshl_b32 s16, s23, 8''')
        for i in range(16):
            a(f'    buffer_load_dwordx2 {v(EPI+2*i,2)}, v{T+9}, s[40:43], s16 offen')
            if i<15: a('    s_add_u32 s16, s16, 16384')
        srd(a,44,4,2*3584*4,WS_UW)
        return 0

def epilogue(a,kind,c,ACC,WF,EPI,T,VL,VAOFF):
    P=WF
    if kind=='qkv':
        a(f'    s_mov_b32 s31, 0x3e829296      ; log2(e)/sqrt(32)')
        for sb in range(6):
            mat=sb//2; sp=sb%2
            base=[WS_QF,WS_KF,WS_VF][mat]
            a(f'''    s_lshl_b32 s16, s21, 1
    s_add_u32 s16, s16, {sp}
    s_lshl_b32 s16, s16, 6
    s_add_u32 s16, s16, s23
    s_lshl_b32 s16, s16, 11''')
            srd_dyn(a,40,4,16,2048,base)
            r0=ACC+16*sb; p=P+8*(sb%2)
            if mat==0:
                for i in range(16): a(f'    v_mul_f32 v{r0+i}, s31, v{r0+i}')
            for j in range(8): a(f'    v_cvt_pk_bf16_f32 v{p+j}, v{r0+2*j}, v{r0+2*j+1}')
            a(f'    buffer_store_dwordx4 {v(p,4)}, v{VAOFF}, s[40:43], 0 offen')
            a(f'    buffer_store_dwordx4 {v(p+4,4)}, v{VAOFF}, s[40:43], 0 offen offset:1024')
        return
    if kind in('wo','ffn2'):
        X=EPI; G=EPI+16; G2=EPI+48; t0=T; t1=T+1; t2=T+2
        for sb in range(2):
            for j in range(8):
                r=ACC+16*sb+2*j; g=G+16*sb+2*j; x=X+8*sb+j
                round_pair(a,r,r+1,r,r+1,t0,30)
                a(f'    v_mul_f32 v{r}, v{r}, v{g}')
                a(f'    v_mul_f32 v{r+1}, v{r+1}, v{g+1}')
                round_pair(a,r,r+1,r,r+1,t0,30)
                a(f'    v_lshlrev_b32 v{t1}, 16, v{x}')
                a(f'    v_and_b32 v{t2}, s30, v{x}')
                a(f'    v_add_f32 v{r}, v{r}, v{t1}')
                a(f'    v_add_f32 v{r+1}, v{r+1}, v{t2}')
                a(f'    v_cvt_pk_bf16_f32 v{P+8*sb+j}, v{r}, v{r+1}')
        if kind=='wo':
            a(f'''    s_lshl_b32 s16, s23, 16
    s_lshl_b32 s17, s21, 12
    s_add_u32 s16, s16, s17''')
            srd_dyn(a,40,4,16,4096,WS_X1)
            srd_dyn(a,44,4,16,4096,WS_X1G)
            for j in range(4):
                a(f'    buffer_store_dwordx4 {v(P+4*j,4)}, v{VAOFF}, s[40:43], 0 offen offset:{1024*j}')
            for sb in range(2):
                for j in range(8):
                    r=ACC+16*sb+2*j
                    a(f'    v_lshlrev_b32 v{r}, 16, v{P+8*sb+j}')
                    a(f'    v_and_b32 v{r+1}, s30, v{P+8*sb+j}')
            Q=P+16
            for i in range(32): a(f'    v_add_f32 v{G2+i}, 1.0, v{G2+i}')
            for i in range(0,32,2): round_pair(a,G2+i,G2+i+1,G2+i,G2+i+1,t0,30)
            for i in range(32): a(f'    v_mul_f32 v{G2+i}, v{G2+i}, v{ACC+i}')
            for j in range(16): a(f'    v_cvt_pk_bf16_f32 v{G+j}, v{G2+2*j}, v{G2+2*j+1}')
            for j in range(4):
                a(f'    buffer_store_dwordx4 {v(G+4*j,4)}, v{VAOFF}, s[44:47], 0 offen offset:{1024*j}')
            a(f'    v_add_f32 v{t0}, v{ACC}, v{ACC+1}')
            for i in range(2,32): a(f'    v_add_f32 v{t0}, v{t0}, v{ACC+i}')
            a(f'''    v_mov_b32 v{t1}, v{t0}
    s_nop 1
    v_permlane32_swap_b32 v{t0}, v{t1}
    s_nop 1
    v_add_f32 v{t0}, v{t0}, v{t1}
    v_mul_f32 v{t0}, 0x3c800000, v{t0}      ; /64
    v_sub_f32 v{t2}, v{ACC}, v{t0}
    v_mul_f32 v{t1}, v{t2}, v{t2}''')
            for i in range(1,32):
                a(f'    v_sub_f32 v{t2}, v{ACC+i}, v{t0}')
                a(f'    v_fmac_f32 v{t1}, v{t2}, v{t2}')
            a(f'''    v_mov_b32 v{t2}, v{t1}
    s_nop 1
    v_permlane32_swap_b32 v{t1}, v{t2}
    s_nop 1
    v_add_f32 v{t1}, v{t1}, v{t2}''')
            srd(a,48,4,16*2048*8,WS_STAT)
            a(f'''    v_and_b32 v{T+3}, 31, v{VL}
    v_lshlrev_b32 v{T+3}, 3, v{T+3}
    s_lshl_b32 s16, s21, 14
    s_lshl_b32 s17, s23, 8
    s_add_u32 s16, s16, s17
    v_cmp_gt_u32 vcc, 32, v{VL}
    s_and_saveexec_b64 s[52:53], vcc
    buffer_store_dwordx2 {v(t0,2)}, v{T+3}, s[48:51], s16 offen
    s_mov_b64 exec, s[52:53]''')
        else:
            srd(a,40,34,MB4)
            a(f'''    v_and_b32 v{T+3}, 31, v{VL}
    v_lshlrev_b32 v{T+3}, 11, v{T+3}       ; token*2048
    v_lshrrev_b32 v{T+4}, 5, v{VL}
    v_lshlrev_b32 v{T+4}, 4, v{T+4}
    v_add_u32 v{T+3}, v{T+3}, v{T+4}
    s_lshl_b32 s16, s23, 16                ; tt*32*2048
    s_lshl_b32 s17, s21, 7
    s_add_u32 s16, s16, s17''')
            for sb in range(2):
                for qp in range(2):
                    p=P+8*sb+4*qp
                    a(f'''    s_nop 1
    v_permlane32_swap_b32 v{p}, v{p+2}
    v_permlane32_swap_b32 v{p+1}, v{p+3}
    s_nop 1
    buffer_store_dwordx4 {v(p,4)}, v{T+3}, s[40:43], s16 offen offset:{64*sb+32*qp}''')
        return
    if kind=='ffn1':
        S=EPI; t0=T; t1=T+1; t2=T+2; t3=T+3
        a(f'''    s_barrier
    v_lshlrev_b32 v{t0}, 2, v0
    s_mul_i32 s16, s21, 896
    v_cmp_gt_u32 vcc, 224, v0
    s_and_saveexec_b64 s[52:53], vcc
    buffer_load_dword v{t1}, v{t0}, s[44:47], s16 offen
    s_add_u32 s16, s16, 14336
    buffer_load_dword v{t2}, v{t0}, s[44:47], s16 offen
    s_waitcnt vmcnt(0)
    ds_write_b32 v{t0}, v{t1}
    ds_write_b32 v{t0}, v{t2} offset:1024
    s_mov_b64 exec, s[52:53]
    s_waitcnt lgkmcnt(0)
    s_barrier''')
        a(f'    v_add_f32 v{t0}, v{S}, v{S+2}')
        for i in range(2,16): a(f'    v_add_f32 v{t0}, v{t0}, v{S+2*i}')
        a(f'    v_mul_f32 v{t0}, 0x3d800000, v{t0}       ; /16')
        a(f'    v_add_f32 v{t1}, v{S+1}, v{S+3}')
        for i in range(2,16): a(f'    v_add_f32 v{t1}, v{t1}, v{S+2*i+1}')
        a(f'''    v_sub_f32 v{t3}, v{S}, v{t0}
    v_mul_f32 v{t2}, v{t3}, v{t3}''')
        for i in range(1,16):
            a(f'    v_sub_f32 v{t3}, v{S+2*i}, v{t0}')
            a(f'    v_fmac_f32 v{t2}, v{t3}, v{t3}')
        a(f'''    v_fmac_f32 v{t1}, 0x42800000, v{t2}      ; + 64*..
    v_mul_f32 v{t1}, 0x3a800000, v{t1}       ; var
    v_cvt_pk_bf16_f32 v{t2}, v{t1}, v{t0}
    v_lshlrev_b32 v{t1}, 16, v{t2}           ; var_b
    v_and_b32 v{t0}, s30, v{t2}              ; mu_b
    v_add_f32 v{t1}, 0x3727c5ac, v{t1}
    v_cvt_pk_bf16_f32 v{t2}, v{t1}, v{t1}
    v_lshlrev_b32 v{t1}, 16, v{t2}
    v_sqrt_f32 v{t1}, v{t1}
    s_nop 0
    v_cvt_pk_bf16_f32 v{t2}, v{t1}, v{t1}
    v_lshlrev_b32 v{t1}, 16, v{t2}
    v_rcp_f32 v{t1}, v{t1}                   ; r
    s_nop 0
    v_mul_f32 v{t0}, v{t0}, v{t1}            ; r*mu
    v_lshrrev_b32 v{t3}, 5, v{VL}
    v_lshlrev_b32 v{t3}, 4, v{t3}            ; 4h*4''')
        a(f'''    s_mul_i32 s16, s23, {112*2048}
    s_mul_i32 s17, s21, {7*2048}
    s_add_u32 s16, s16, s17''')
        srd_dyn(a,40,4,16,7*2048,WS_HH)
        UU=S; WW=S+16
        for sb in range(7):
            for q in range(4):
                a(f'    ds_read_b128 {v(UU+4*q,4)}, v{t3} offset:{(32*sb+8*q)*4}')
                a(f'    ds_read_b128 {v(WW+4*q,4)}, v{t3} offset:{1024+(32*sb+8*q)*4}')
            a('    s_waitcnt lgkmcnt(0)')
            r0=ACC+16*sb; p=WF+8*(sb%2)
            for i in range(16):
                a(f'    v_fma_f32 v{WW+i}, -v{t0}, v{UU+i}, v{WW+i}')
            for i in range(16):
                a(f'    v_fma_f32 v{r0+i}, v{t1}, v{r0+i}, v{WW+i}')
            for i in range(16):
                a(f'    v_max_f32 v{r0+i}, 0, v{r0+i}')
            for j in range(8): a(f'    v_cvt_pk_bf16_f32 v{p+j}, v{r0+2*j}, v{r0+2*j+1}')
            if sb*2048>=4096:
                a(f'    s_mov_b32 s16, {sb*2048}')
                a(f'    buffer_store_dwordx4 {v(p,4)}, v{VAOFF}, s[40:43], s16 offen')
                a(f'    buffer_store_dwordx4 {v(p+4,4)}, v{VAOFF}, s[40:43], s16 offen offset:1024')
            else:
                a(f'    buffer_store_dwordx4 {v(p,4)}, v{VAOFF}, s[40:43], 0 offen offset:{sb*2048}')
                a(f'    buffer_store_dwordx4 {v(p+4,4)}, v{VAOFF}, s[40:43], 0 offen offset:{sb*2048+1024}')
        return
```

```python
from lib import *

def k_gemv(a, label, mode):
    nwg = 96 if mode=='mod' else 56
    ldw = 12288 if mode=='mod' else 7168
    wbytes = 1024*ldw
    end=a.label('END')
    SV=0; RED=4096; WB=8192
    a.begin(label)
    guard(a, nwg, end)
    ldptr(a,4,KA_WS); ldptr(a,6,KA_WMOD if mode=='mod' else KA_W1)
    if mode=='mod': ldptr(a,20,KA_C)
    waveid(a,22,1)
    a('    v_and_b32 v1, 63, v0              ; lane')
    a('    s_waitcnt lgkmcnt(0)')
    srd(a,8,6,wbytes)
    if mode=='mod':
        srd(a,12,20,2048); srd(a,16,4,6144*4,WS_MOD)
    else:
        srd(a,12,4,6144*4,WS_MOD); srd(a,16,4,2*3584*4,WS_UW)
    a('    s_mov_b32 s30, 0xffff0000')
    if mode=='mod':
        a('''    v_lshlrev_b32 v2, 3, v0
    buffer_load_dwordx2 v[4:5], v2, s[12:15], 0 offen''')
    else:
        a('''    v_lshlrev_b32 v2, 4, v0
    v_add_u32 v3, 0x4000, v2
    buffer_load_dwordx4 v[4:7], v3, s[12:15], 0 offen
    v_add_u32 v3, 0x3000, v2
    buffer_load_dwordx4 v[8:11], v3, s[12:15], 0 offen''')
    dma_lane_off128(a, 12, 1, ldw, 13, 14)
    a(f'''    s_mul_i32 s23, s22, {256*ldw}
    s_lshl_b32 s24, s2, 7
    s_add_u32 s23, s23, s24           ; soffset
    s_lshl_b32 s25, s22, 15
    s_add_u32 s25, s25, {WB}          ; m0 base''')
    for i in range(32):
        a(f'''    s_add_u32 m0, s25, {i*1024}
    s_nop 0
    buffer_load_dwordx4 v12, s[8:11], s23 offen lds''')
        if i<31: a(f'    s_add_u32 s23, s23, {8*ldw}')
    a('    s_waitcnt vmcnt(32)')
    if mode=='mod':
        a('''    v_lshlrev_b32 v6, 16, v4
    v_and_b32 v7, s30, v4
    v_lshlrev_b32 v8, 16, v5
    v_and_b32 v9, s30, v5''')
        for i in range(4):
            a(f'''    v_mul_f32 v{14+i}, 0xbfb8aa3b, v{6+i}''')
        for i in range(4):
            a(f'''    v_exp_f32 v{14+i}, v{14+i}''')
        a('    s_nop 0')
        for i in range(4):
            a(f'''    v_add_f32 v{14+i}, 1.0, v{14+i}''')
        for i in range(4):
            a(f'''    v_rcp_f32 v{14+i}, v{14+i}''')
        a('    s_nop 0')
        for i in range(4):
            a(f'''    v_mul_f32 v{14+i}, v{6+i}, v{14+i}''')
        a('''    v_cvt_pk_bf16_f32 v18, v14, v15
    v_cvt_pk_bf16_f32 v19, v16, v17
    v_lshlrev_b32 v2, 3, v0
    ds_write_b64 v2, v[18:19]''')
    else:
        for i in range(4): a(f'    v_add_f32 v{4+i}, 1.0, v{4+i}')
        a('''    v_cvt_pk_bf16_f32 v18, v4, v5
    v_cvt_pk_bf16_f32 v19, v6, v7
    v_cvt_pk_bf16_f32 v20, v8, v9
    v_cvt_pk_bf16_f32 v21, v10, v11
    v_lshlrev_b32 v2, 3, v0
    ds_write_b64 v2, v[18:19]
    ds_write_b64 v2, v[20:21] offset:2048''')
    tr_lane_base(a, 22, 23, 1, 13, 14, 15)
    a(f'''    s_lshl_b32 s25, s22, 15
    s_add_u32 s25, s25, {WB}
    v_add_u32 v22, s25, v22
    v_add_u32 v23, s25, v23
    v_lshrrev_b32 v24, 5, v1
    v_lshlrev_b32 v24, 3, v24          ; 4h*2 bytes
    s_lshl_b32 s25, s22, 9             ; 256w*2
    v_add_u32 v24, s25, v24''')
    if mode=='uw':
        a('''    v_and_b32 v25, 1, v1
    v_lshlrev_b32 v25, 11, v25
    v_add_u32 v24, v24, v25''')
    for i in range(32): a(f'    v_mov_b32 v{32+i}, 0')
    a('    s_waitcnt lgkmcnt(0)')
    for i in range(16):
        b=64+(i%2)*16
        a(f'''    s_waitcnt vmcnt({30-2*i})
    ds_read_b64 v[{b}:{b+1}], v24 offset:{32*i}
    ds_read_b64 v[{b+2}:{b+3}], v24 offset:{32*i+16}
    ds_read_b64_tr_b16 v[{b+4}:{b+5}], v22 offset:{(16*i)*128}
    ds_read_b64_tr_b16 v[{b+6}:{b+7}], v22 offset:{(16*i+8)*128}
    ds_read_b64_tr_b16 v[{b+8}:{b+9}], v23 offset:{(16*i)*128}
    ds_read_b64_tr_b16 v[{b+10}:{b+11}], v23 offset:{(16*i+8)*128}
    s_waitcnt lgkmcnt(0)
    v_mfma_f32_32x32x16_bf16 v[32:47], v[{b+4}:{b+7}], v[{b}:{b+3}], v[32:47]
    v_mfma_f32_32x32x16_bf16 v[48:63], v[{b+8}:{b+11}], v[{b}:{b+3}], v[48:63]''')
    nv = 1 if mode=='mod' else 2
    a(f'''    s_nop 15
    v_and_b32 v2, 31, v1
    v_lshrrev_b32 v3, 5, v1
    v_lshlrev_b32 v3, 4, v3            ; 4h*4 bytes
    v_lshlrev_b32 v4, 8, v2            ; vec*256
    v_add_u32 v3, v3, v4
    s_lshl_b32 s25, s22, 9             ; w*512
    s_add_u32 s25, s25, {RED}
    v_add_u32 v3, s25, v3
    v_cmp_gt_u32 vcc, {nv}, v2
    s_and_saveexec_b64 s[26:27], vcc''')
    for sb in range(2):
        for q in range(4):
            a(f'    ds_write_b128 v3, v[{32+16*sb+4*q}:{35+16*sb+4*q}] offset:{sb*128+q*32}')
    a(f'''    s_mov_b64 exec, s[26:27]
    s_waitcnt lgkmcnt(0)
    s_barrier
    v_cmp_gt_u32 vcc, {64*nv}, v0
    s_and_saveexec_b64 s[26:27], vcc
    s_cbranch_execz {end}
    v_lshlrev_b32 v2, 2, v0
    ds_read_b32 v4, v2 offset:{RED}
    ds_read_b32 v5, v2 offset:{RED+512}
    ds_read_b32 v6, v2 offset:{RED+1024}
    ds_read_b32 v7, v2 offset:{RED+1536}
    s_waitcnt lgkmcnt(0)
    v_add_f32 v4, v4, v5
    v_add_f32 v6, v6, v7
    v_add_f32 v4, v4, v6''')
    if mode=='mod':
        a('''    v_cvt_pk_bf16_f32 v4, v4, v4
    v_lshlrev_b32 v4, 16, v4
    s_lshl_b32 s25, s2, 8
    v_add_u32 v2, s25, v2''')
    else:
        a('''    v_and_b32 v5, 63, v0
    v_lshlrev_b32 v5, 2, v5
    v_lshrrev_b32 v6, 6, v0
    v_mul_u32_u24 v6, 14336, v6
    s_lshl_b32 s25, s2, 8
    v_add3_u32 v2, v5, v6, s25''')
    a(f'''    buffer_store_dword v4, v2, s[16:19], 0 offen
{end}:
    s_endpgm''')
    a.end(label, vgpr=128, accum=128)
    a.launch(label, nwg, 256, WB+131072)

def k_ln1(a, label):
    end=a.label('END')
    a.begin(label)
    guard(a,256,end)
    ldptr(a,4,KA_WS); ldptr(a,6,KA_X)
    waveid(a,22,1)
    a('''    v_and_b32 v1, 63, v0
    v_and_b32 v2, 7, v1               ; t
    v_lshrrev_b32 v3, 3, v1           ; cg
    s_lshl_b32 s23, s22, 3
    v_add_u32 v3, s23, v3             ; u = 8w+cg
    s_waitcnt lgkmcnt(0)''')
    srd(a,8,6,MB4); srd(a,12,4,6144*4,WS_MOD); srd(a,16,4,MB4,WS_XF); srd(a,24,4,MB4,WS_H1)
    a('''    s_mov_b32 s30, 0xffff0000
    s_lshl_b32 s23, s2, 3
    v_add_u32 v4, s23, v2             ; token
    v_lshlrev_b32 v5, 11, v4
    v_lshlrev_b32 v6, 5, v3
    v_add_u32 v5, v5, v6              ; x offset
    buffer_load_dwordx4 v[8:11], v5, s[8:11], 0 offen
    buffer_load_dwordx4 v[12:15], v5, s[8:11], 0 offen offset:16
    v_lshlrev_b32 v6, 6, v3           ; u*16 floats*4B''')
    for q in range(4):
        a(f'    buffer_load_dwordx4 v[{48+4*q}:{51+4*q}], v6, s[12:15], 0 offen offset:{16*q}')
    a('    v_add_u32 v7, 0x1000, v6')
    for q in range(4):
        a(f'    buffer_load_dwordx4 v[{64+4*q}:{67+4*q}], v7, s[12:15], 0 offen offset:{16*q}')
    a('''    v_lshrrev_b32 v6, 5, v4
    v_lshlrev_b32 v6, 16, v6
    v_and_b32 v7, 31, v4
    v_lshlrev_b32 v7, 4, v7
    v_add_u32 v6, v6, v7
    v_lshlrev_b32 v7, 10, v3
    v_add_u32 v6, v6, v7
    s_waitcnt vmcnt(8)''')
    for d in range(8):
        a(f'    v_lshlrev_b32 v{16+2*d}, 16, v{8+d}')
        a(f'    v_and_b32 v{17+2*d}, s30, v{8+d}')
    a('''    v_swap_b32 v10, v12
    v_swap_b32 v11, v13
    s_nop 1
    buffer_store_dwordx4 v[8:11], v6, s[16:19], 0 offen
    buffer_store_dwordx4 v[12:15], v6, s[16:19], 0 offen offset:512''')
    def reduce_all(reg, ldsoff):
        a(f'''    s_nop 1
    v_add_f32_dpp v{reg}, v{reg}, v{reg} row_ror:8 row_mask:0xf bank_mask:0xf
    v_mov_b32 v33, v{reg}
    s_nop 1
    v_permlane16_swap_b32 v{reg}, v33
    s_nop 1
    v_add_f32 v{reg}, v{reg}, v33
    v_mov_b32 v33, v{reg}
    s_nop 1
    v_permlane32_swap_b32 v{reg}, v33
    s_nop 1
    v_add_f32 v{reg}, v{reg}, v33
    v_lshlrev_b32 v34, 2, v2          ; t*4
    s_lshl_b32 s23, s22, 5
    v_add_u32 v35, s23, v34           ; w*32 + t*4
    ds_write_b32 v35, v{reg} offset:{ldsoff}
    s_waitcnt lgkmcnt(0)
    s_barrier''')
        for w in range(8):
            a(f'    ds_read_b32 v{36+w}, v34 offset:{ldsoff+32*w}')
        a('    s_waitcnt lgkmcnt(0)')
        a(f'''    v_add_f32 v36, v36, v37
    v_add_f32 v38, v38, v39
    v_add_f32 v40, v40, v41
    v_add_f32 v42, v42, v43
    v_add_f32 v36, v36, v38
    v_add_f32 v40, v40, v42
    v_add_f32 v{reg}, v36, v40''')
    a('    v_add_f32 v32, v16, v17')
    for i in range(2,16): a(f'    v_add_f32 v32, v32, v{16+i}')
    reduce_all(32, 0)
    a('    v_mul_f32 v32, 0x3a800000, v32')
    a('''    v_sub_f32 v33, v16, v32
    v_mul_f32 v44, v33, v33''')
    for i in range(1,16):
        a(f'''    v_sub_f32 v33, v{16+i}, v32
    v_fmac_f32 v44, v33, v33''')
    reduce_all(44, 256)
    a('''    v_mul_f32 v44, 0x3a800000, v44
    v_cvt_pk_bf16_f32 v45, v44, v32
    v_lshlrev_b32 v44, 16, v45         ; var_b
    v_and_b32 v32, s30, v45            ; mu_b
    v_add_f32 v44, 0x3727c5ac, v44     ; + 1e-5
    v_cvt_pk_bf16_f32 v45, v44, v44
    v_lshlrev_b32 v44, 16, v45
    v_sqrt_f32 v44, v44
    s_nop 0
    v_cvt_pk_bf16_f32 v45, v44, v44
    v_lshlrev_b32 v44, 16, v45         ; den
    v_rcp_f32 v44, v44
    s_waitcnt vmcnt(2)''')
    for i in range(16): a(f'    v_add_f32 v{64+i}, 1.0, v{64+i}')
    for i in range(0,16,2): round_pair(a, 64+i, 65+i, 64+i, 65+i, 45, 30)
    for i in range(16): a(f'    v_sub_f32 v{16+i}, v{16+i}, v32')
    for i in range(0,16,2): round_pair(a, 16+i, 17+i, 16+i, 17+i, 45, 30)
    for i in range(16): a(f'    v_mul_f32 v{16+i}, v{16+i}, v44')
    for i in range(0,16,2): round_pair(a, 16+i, 17+i, 16+i, 17+i, 45, 30)
    for i in range(16): a(f'    v_mul_f32 v{16+i}, v{16+i}, v{64+i}')
    for i in range(0,16,2): round_pair(a, 16+i, 17+i, 16+i, 17+i, 45, 30)
    for i in range(16): a(f'    v_add_f32 v{16+i}, v{16+i}, v{48+i}')
    order=[0,2,8,10, 4,6,12,14]
    for j,c in enumerate(order):
        a(f'    v_cvt_pk_bf16_f32 v{80+j}, v{16+c}, v{17+c}')
    a(f'''    buffer_store_dwordx4 v[80:83], v6, s[24:27], 0 offen
    buffer_store_dwordx4 v[84:87], v6, s[24:27], 0 offen offset:512
{end}:
    s_endpgm''')
    a.end(label, vgpr=96, accum=96)
    a.launch(label, 256, 512, 1024)
```

```python
from asmlib import Asm, NAME
KA_X,KA_WQKV,KA_WO,KA_BX,KA_W1,KA_W2,KA_C,KA_WMOD,KA_OUT,KA_DBG,KA_WS = 0,8,16,24,32,40,48,56,64,72,80
WS_MOD = 0x0
WS_UW  = 0x10000
WS_STAT= 0x20000
WS_XF  = 0x100000
WS_H1  = 0x500000
WS_QF  = 0x900000
WS_KF  = 0xD00000
WS_VF  = 0x1100000
WS_OF  = 0x1500000
WS_X1  = 0x1900000
WS_X1G = 0x1D00000
WS_HH  = 0x2100000
MB4 = 0x400000
def v(i,n=1): return f'v{i}' if n==1 else f'v[{i}:{i+n-1}]'
def a_(i,n=1): return f'a{i}' if n==1 else f'a[{i}:{i+n-1}]'
def s(i,n=1): return f's{i}' if n==1 else f's[{i}:{i+n-1}]'
def ldptr(a, sreg, ka):
    a(f'    s_load_dwordx2 s[{sreg}:{sreg+1}], s[0:1], {ka}')
def srd(a, sreg, pbase, nbytes, off=0):
    if off:
        a(f'    s_add_u32 s{sreg}, s{pbase}, {off}')
        a(f'    s_addc_u32 s{sreg+1}, s{pbase+1}, 0')
        a(f'    s_and_b32 s{sreg+1}, s{sreg+1}, 0xffff')
    else:
        a(f'    s_mov_b32 s{sreg}, s{pbase}')
        a(f'    s_and_b32 s{sreg+1}, s{pbase+1}, 0xffff')
    a(f'    s_mov_b32 s{sreg+2}, {nbytes}')
    a(f'    s_mov_b32 s{sreg+3}, 0x20000')
def srd_dyn(a, sreg, pbase, soff, nbytes, off=0):
    a(f'    s_add_u32 s{sreg}, s{pbase}, s{soff}')
    a(f'    s_addc_u32 s{sreg+1}, s{pbase+1}, 0')
    if off:
        a(f'    s_add_u32 s{sreg}, s{sreg}, {off}')
        a(f'    s_addc_u32 s{sreg+1}, s{sreg+1}, 0')
    a(f'    s_and_b32 s{sreg+1}, s{sreg+1}, 0xffff')
    a(f'    s_mov_b32 s{sreg+2}, {nbytes}')
    a(f'    s_mov_b32 s{sreg+3}, 0x20000')
def guard(a, n, lab):
    a(f'    s_cmp_ge_u32 s2, {n}')
    a(f'    s_cbranch_scc1 {lab}')
def waveid(a, sreg, vtmp):
    a(f'    v_lshrrev_b32 v{vtmp}, 6, v0')
    a(f'    s_nop 0')
    a(f'    v_readfirstlane_b32 s{sreg}, v{vtmp}')
def round_pair(a, d0, d1, x0, x1, tmp, smask):
    a(f'    v_cvt_pk_bf16_f32 v{tmp}, v{x0}, v{x1}')
    a(f'    v_lshlrev_b32 v{d0}, 16, v{tmp}')
    a(f'    v_and_b32 v{d1}, s{smask}, v{tmp}')
def tr_lane_base(a, dst0, dst1, vl, t0, t1, t2):
    a(f'''    v_lshrrev_b32 v{t0}, 5, v{vl}          ; h
    v_lshlrev_b32 v{t0}, 2, v{t0}          ; 4h
    v_bfe_u32 v{t1}, v{vl}, 2, 2           ; i>>2
    v_add_u32 v{t0}, v{t0}, v{t1}          ; row
    v_lshlrev_b32 v{t0}, 7, v{t0}          ; row*128
    v_bfe_u32 v{t1}, v{vl}, 4, 1           ; G&1
    v_lshlrev_b32 v{t1}, 1, v{t1}
    v_bfe_u32 v{t2}, v{vl}, 1, 1           ; (i>>1)&1
    v_add_u32 v{t1}, v{t1}, v{t2}          ; chunk (s=0)
    v_bfe_u32 v{t2}, v{vl}, 3, 1           ; (i>>3)&1
    v_lshlrev_b32 v{t2}, 2, v{t2}          ; X
    v_xor_b32 v{t1}, v{t1}, v{t2}
    v_lshlrev_b32 v{t1}, 4, v{t1}
    v_add_u32 v{t0}, v{t0}, v{t1}
    v_and_b32 v{t2}, 1, v{vl}
    v_lshlrev_b32 v{t2}, 3, v{t2}
    v_add_u32 v{dst0}, v{t0}, v{t2}
    v_xor_b32 v{dst1}, 64, v{dst0}''')
def dma_lane_off128(a, dst, vl, ld, t0, t1):
    a(f'''    v_lshrrev_b32 v{t0}, 3, v{vl}          ; row
    v_bfe_u32 v{t1}, v{vl}, 4, 1           ; (row>>1)&1
    v_lshlrev_b32 v{t1}, 2, v{t1}
    v_and_b32 v{dst}, 7, v{vl}
    v_xor_b32 v{dst}, v{dst}, v{t1}
    v_lshlrev_b32 v{dst}, 4, v{dst}
    v_mul_u32_u24 v{t0}, {ld}, v{t0}
    v_add_u32 v{dst}, v{dst}, v{t0}''')
```

```python
import sys
from lib import *
from k_small import *
from k_gemm import *
from k_attn import *
HEADER=open('adaLN_cond__mha_block__dense_activation_relu__prompt.s.ref').read().split('; Override launch')[0].rstrip()
def build(path, kernels=None, **kw):
    a=Asm()
    ks=kernels or ['mod','uw','ln1','qkv','attn','wo','ffn1','ffn2']
    for k in ks:
        if k=='mod': k_gemv(a,'mod_kernel','mod')
        elif k=='uw': k_gemv(a,'uw_kernel','uw')
        elif k=='ln1': k_ln1(a,'ln1_kernel')
        elif k=='attn': k_attn(a,'attn_kernel',kw.get('pack','cvt'))
        else: k_gemm(a,k+'_kernel',k)
    open(path,'w').write(a.text(HEADER))
if __name__=='__main__':
    build(sys.argv[1] if len(sys.argv)>1 else 'k/v1.s')
```
